```python
import torch

def _softmax(x, axis=-1):
    return torch.softmax(x, dim=axis)
def _gelu(x):
    return torch.nn.functional.gelu(x, approximate="tanh")
def _silu(x):
    return torch.nn.functional.silu(x)
def _sigmoid(x):
    return torch.sigmoid(x)
def _layernorm(x, axis=-1, eps=1e-5):
    m = x.mean(dim=axis, keepdim=True)
    v = x.var(dim=axis, keepdim=True, unbiased=False)
    return (x - m) / torch.sqrt(v + eps)
def _scatter_add(tgt, idx, src, axis=0):
    return tgt.clone().index_add_(axis, idx, src)
def _segment_sum(src, seg, n):
    out = torch.zeros((n,) + src.shape[1:], dtype=src.dtype)
    return out.index_add_(0, seg, src)
def _pad(x, pw):
    flat = tuple(v for pair in reversed(pw) for v in pair)
    return torch.nn.functional.pad(x, flat)

kernel_name = 'recurrent_scan__sliding_local_dilated__dense_activation_squared_relu__prompt'

def setup_inputs():

    _w = (lambda a: (lambda t: t.to(torch.bfloat16) if t.is_floating_point() else t)(torch.as_tensor(a)))
    def _A_setup():
        B, S, D = 1, 2048, 512
        return {
            "x": _w((lambda *s: torch.randn(*s, dtype=torch.bfloat16) * 0.05)(B, S, D)),
            "wqkv": _w((lambda *s: torch.randn(*s, dtype=torch.bfloat16) * 0.05)(D, 3 * D)),
            "wo": _w((lambda *s: torch.randn(*s, dtype=torch.bfloat16) * 0.05)(D, D)),
        }
    _A_in = _A_setup()

    def _B_setup():
        B, S, D, F = 1, 2048, 512, 1792
        return {
            "x": _w((lambda *s: torch.randn(*s, dtype=torch.bfloat16) * 0.05)(B, S, D)),
            "w1": _w((lambda *s: torch.randn(*s, dtype=torch.bfloat16) * 0.05)(D, F)),
            "b1": _w((lambda *s: torch.randn(*s, dtype=torch.bfloat16) * 0.4)(F)),
            "w2": _w((lambda *s: torch.randn(*s, dtype=torch.bfloat16) * 0.05)(F, D)),
            "b2": _w((lambda *s: torch.randn(*s, dtype=torch.bfloat16) * 0.8)(D)),
        }
    _B_in = _B_setup()

    return {
        "A_x": _A_in["x"],
        "A_wqkv": _A_in["wqkv"],
        "A_wo": _A_in["wo"],
        "B_x": _B_in["x"],
        "B_w1": _B_in["w1"],
        "B_b1": _B_in["b1"],
        "B_w2": _B_in["w2"],
        "B_b2": _B_in["b2"],
    }

def reference(A_x, A_wqkv, A_wo, B_x, B_w1, B_b1, B_w2, B_b2):
    def _A_ref(x, wqkv, wo):
        B, S, D = x.shape
        H = 32; Dh = D // H
        W, dil = 8, 2
        qkv = (lambda x, *d: x.permute(*d))((x @ wqkv).reshape(B, S, 3, H, Dh), 2, 0, 3, 1, 4)
        q, k, v = qkv[0], qkv[1], qkv[2]
        scale = Dh ** -0.5
        pos = torch.arange(S)
        off = torch.arange(W) * dil
        idx = pos[:, None] - off[None, :]
        mask = idx >= 0
        idx_c = torch.where(mask, idx, 0).reshape(-1)
        kg = k[:, :, idx_c, :].reshape(B, H, S, W, Dh)
        vg = v[:, :, idx_c, :].reshape(B, H, S, W, Dh)
        logits = torch.einsum("bhsd,bhswd->bhsw", q, kg) * scale
        logits = torch.where(mask[None, None, :, :], logits, -1e9)
        attn = _softmax(logits, axis=-1)
        o = torch.einsum("bhsw,bhswd->bhsd", attn, vg)
        return (lambda x, *d: x.permute(*d))(o, 0, 2, 1, 3).reshape(B, S, D) @ wo

    def _B_ref(x, w1, b1, w2, b2):
        h = torch.einsum("bsd,df->bsf", x, w1) + b1
        zero = torch.zeros_like(h)
        r = torch.where(h > zero, h, zero)
        h = r * r
        out = torch.einsum("bsf,fd->bsd", h, w2) + b2
        return out

    x = A_x
    xn = _layernorm(x, axis=-1)
    s = _A_ref(xn, A_wqkv, A_wo)
    g = _silu(_B_ref(xn, B_w1, B_b1, B_w2, B_b2))
    return x + s * g
```

```python
NAME = "recurrent_scan__sliding_local_dilated__dense_activation_squared_relu__prompt"
class Asm:
    def __init__(self):
        self.lines = []
        self.nlab = 0
    def __call__(self, s=""):
        for l in s.split("\n"):
            self.lines.append("    " + l.strip() if l.strip() and not l.strip().endswith(":") else l.strip())
    def label(self, base="L"):
        self.nlab += 1
        return f"{base}_{self.nlab}"
    def text(self):
        return "\n".join(self.lines) + "\n"

def kernel_wrap(name, body, vgpr, sgpr=102, accum=None, extra=""):
    if accum is None: accum = (min(vgpr,256) + 3)//4*4
    return f""".text
.globl {name}
.p2align 8
.type {name},@function
{name}:
{body}
.section .rodata,"a"
.p2align 6
.amdhsa_kernel {name}
  .amdhsa_next_free_vgpr {vgpr}
  .amdhsa_next_free_sgpr {sgpr}
  .amdhsa_accum_offset {accum}
  .amdhsa_group_segment_fixed_size 0
  .amdhsa_kernarg_size 88
  .amdhsa_user_sgpr_count 2
  .amdhsa_user_sgpr_kernarg_segment_ptr 1
  .amdhsa_system_sgpr_workgroup_id_x 1
{extra}.end_amdhsa_kernel
"""
def header(launches):
    s = ""
    for k, g, b, lds in launches:
        if k is None:
            s += f"; @launch grid=({g},1,1) block=({b},1,1) lds={lds}\n"
        else:
            s += f"; @launch kernel={k} grid=({g},1,1) block=({b},1,1) lds={lds}\n"
    s += '.amdgcn_target "amdgcn-amd-amdhsa--gfx950"\n'
    return s
def srd(a, d, base, nbytes):
    a(f"s_mov_b32 s{d}, s{base}")
    a(f"s_mov_b32 s{d+1}, s{base+1}")
    a(f"s_mov_b32 s{d+2}, {nbytes}")
    a(f"s_mov_b32 s{d+3}, 0x00020000")
```

```python
import sys
sys.path.insert(0, "work")
from asmlib import *
OPT = {}
def O(k, d): return OPT.get(k, d)

STATS, F1, F2, TSTAMP, WS_BYTES = 0x900000, 0x910000, 0x920000, 0x980000, 0xA00000
OOB = 0x7ff00000
STG = 45056
ESB = 135168
TBL = 147456
T_P, T_M, T_R, T_B1, T_CS, T_JUNK = TBL, TBL+2048, TBL+3072, TBL+4096, TBL+5120, 159744
LDS_BYTES = 163840
sRANK = 3
sHM, sHB = 26, 27
S_X, S_W, S_WS, S_DBG, S_BI, S_W2A, S_W2B, S_OUT = 28, 32, 36, 40, 44, 48, 52, 56
sW, sM, sN, sROLE, sRT2, sC2 = 60, 61, 62, 63, 64, 65
sNON = 66
sMH, sNH, sXO, sWO, sM0X, sM0W = 68, 69, 70, 71, 72, 73
sT = 74
sB2A, sB2B, sM0B, sSWP = 80, 81, 82, 83
sMASK, sA2, sROT, sH0, sSO = 84, 86, 87, 88, 90
sST = 92
S_PF = 96
sGRP, sESM, sE1, sE2 = 79, 100, 10, 11
def srd4(n): return f"s[{n}:{n+3}]"
vLANE = 1
vXD, vWD, vXR, vWR = 10, 15, 22, 28
vSTR, vSTS, vF1S, vF1P, vGS, vGB, vPF2 = 37, 38, 39, 40, 41, 42, 43
vNON, vONE, vHX, vG, vTID4 = 44, 46, 50, 58, 60
B2V = [61, 62, 252, 254]
vA2S, vACC, vCS, vT = 63, 64, 176, 204
ESR = [228, 229, 230, 231]
vPFW = 232
vE = 233
BR0, BR1, BR2 = [240, 241, 242, 243], [244, 245, 246, 247], [248, 249, 250, 251]
vJUNK = 253

class G(Asm):
    pending = None
    def __init__(self, dbg=False):
        super().__init__(); self.vm = []; self.dbg = dbg
    def __call__(self, s=""):
        super().__call__(s)
        if self.pending is not None and not s.strip().endswith(":"):
            p, self.pending = self.pending, None
            super().__call__(p[1]); self.vm.append(p[2])
    def flush(self):
        if self.pending is not None: self("s_nop 0")
    def vmem(self, line, tag):
        self.flush(); self(line); self.vm.append(tag)
    def wait_vm(self, tag, extra=""):
        self.flush()
        tags = tag if isinstance(tag, (list, tuple)) else [tag]
        idx = max(i for i, t in enumerate(self.vm) if t in tags)
        self(f"s_waitcnt vmcnt({min(63, len(self.vm) - 1 - idx)}){extra}")
    def stamp(self, k):
        if self.dbg and not (O("fewstamps", 1) and 2 <= k <= 9 and k not in (3, 6)):
            self.flush()
            self(f"s_memtime s[{sST}:{sST+1}]"); self("s_waitcnt lgkmcnt(0)"); self(f"v_writelane_b32 v255, s{sST}, {k}")

def I(t): return ("i", t)
def V(t, tag): return ("v", t, tag)
def GRP(*l): return ("g", [I(x) if isinstance(x, str) else x for x in l])
def emit(g, it):
    k = it[0]
    if k == "i": g(it[1])
    elif k == "v": g.vmem(it[1], it[2])
    elif k == "w": g.wait_vm(it[1])
    elif k == "g":
        for x in it[1]: emit(g, x)
    elif k == "d":
        g.flush()
        for x in it[1]: emit(g, x)
        g.pending = it[2]
def emit_all(g, items):
    for it in items: emit(g, it)
    g.flush()
def merge(*streams):
    ev = []
    for si, (items, lo, hi) in enumerate(streams):
        n = len(items)
        for k, it in enumerate(items): ev.append((lo + (hi - lo) * (k + 0.5) / n, si, k, it))
    ev.sort(key=lambda e: (e[0], e[1], e[2]))
    return [(e[0], e[3]) for e in ev]
def interleave(g, mfmas, timed):
    n = len(mfmas); j = 0
    for i, m in enumerate(mfmas):
        g(m)
        gap = []
        while j < len(timed) and timed[j][0] * n < i + 1:
            gap.append(timed[j][1]); j += 1
            if gap[-1][0] == "d": break
        for it in gap: emit(g, it)
    while j < len(timed): emit(g, timed[j][1]); j += 1
    g.flush()
def mfma(d, a, b, c): return f"v_mfma_f32_16x16x32_bf16 {d}, {a}, {b}, {c}"
def vr(n, k=4): return f"v[{n}:{n+k-1}]"
def ar(n, k=4): return f"a[{n}:{n+k-1}]"
def pr(n): return f"v[{n}:{n+1}]"
def mksrd(d, base, nbytes): return [f"s_mov_b32 s{d}, s{base}", f"s_mov_b32 s{d+1}, s{base+1}", f"s_mov_b32 s{d+2}, {nbytes}", f"s_mov_b32 s{d+3}, 0x00020000"]
def sel(dst, cond, val, other="v3"):
    return GRP(cond, "s_nop 1", f"v_cndmask_b32 v{dst}, {other}, {val}, vcc")

def prologue(g):
    g("L_START:")
    if g.dbg: g(f"s_memtime s[{sST+2}:{sST+3}]")
    g("s_load_dwordx16 s[4:19], s[0:1], 0"); g("s_load_dwordx4 s[20:23], s[0:1], 64"); g("s_load_dwordx2 s[24:25], s[0:1], 80")
    g("s_cmp_ge_u32 s2, 256"); g("s_cbranch_scc1 L_END")
    g(f"s_memrealtime s[{sNON}:{sNON+1}]")
    if g.dbg: g("v_mov_b32 v255, 0")
    g("v_lshrrev_b32 v2, 6, v0"); g(f"v_and_b32 v{vLANE}, 63, v0"); g(f"v_readfirstlane_b32 s{sW}, v2")
    g(f"s_and_b32 s{sT}, s2, 7"); g(f"s_lshr_b32 s{sRANK}, s2, 3")
    g(f"s_lshr_b32 s{sM}, s{sT}, 2"); g(f"s_lshl_b32 s{sM}, s{sM}, 3"); g(f"s_and_b32 s{sT+2}, s{sRANK}, 7"); g(f"s_add_u32 s{sM}, s{sM}, s{sT+2}")
    g(f"s_lshr_b32 s{sT+3}, s{sRANK}, 3")
    g(f"s_lshr_b32 s{sROLE}, s{sT+3}, 1"); g(f"s_xor_b32 s{sROLE}, s{sROLE}, 1")
    g(f"s_and_b32 s{sN}, s{sT}, 3"); g(f"s_lshl_b32 s{sN}, s{sN}, 1"); g(f"s_and_b32 s{sT+4}, s{sT+3}, 1"); g(f"s_add_u32 s{sN}, s{sN}, s{sT+4}")
    g(f"s_lshr_b32 s{sRT2}, s{sT}, 1"); g(f"s_lshl_b32 s{sRT2}, s{sRT2}, 3"); g(f"s_add_u32 s{sRT2}, s{sRT2}, s{sT+2}")
    g(f"s_and_b32 s{sC2}, s{sT}, 1"); g(f"s_lshl_b32 s{sC2}, s{sC2}, 2"); g(f"s_add_u32 s{sC2}, s{sC2}, s{sT+3}")
    rm = O("rot", 0)
    if rm in (2, 4):
        g(f"s_add_u32 s{sROT}, s{sM}, s{sT+3}"); g(f"s_and_b32 s{sROT}, s{sROT}, {rm-1}"); g(f"s_lshl_b32 s{sROT}, s{sROT}, {2 if rm == 2 else 1}")
    g(f"s_lshr_b32 s{sMH}, s{sW}, 1"); g(f"s_and_b32 s{sNH}, s{sW}, 1")
    L = vLANE
    g(f"s_lshl_b32 s{sA2}, s{sM}, 4"); g(f"s_add_u32 s{sA2}, s{sA2}, s{sN}"); g(f"s_lshl_b32 s{sT+1}, s{sROLE}, 3"); g(f"s_add_u32 s{sA2}, s{sA2}, s{sT+1}")
    g(f"s_lshl_b32 s{sT+1}, s{sA2}, 2"); g(f"s_add_u32 s{sT+1}, s{sT+1}, s{sW}")
    g(f"s_lshl_b32 s{sT+2}, s{sT+1}, 11"); g(f"v_lshlrev_b32 v{vA2S}, 4, v{L}"); g(f"v_add_u32 v{vSTR}, s{sT+2}, v{vA2S}")
    R = O("R", 512)
    n1a, n1b = R*28//256, R*24//256; n2a, n2b = (512-R)*28//256, (512-R)*24//256
    g(f"s_cmp_eq_u32 s{sNH}, 0")
    g(f"s_movk_i32 s{sT+1}, {n1a}"); g(f"s_cselect_b32 s{sT+1}, s{sT+1}, {n1b}"); g(f"s_movk_i32 s{sT+2}, {n2a}"); g(f"s_cselect_b32 s{sT+2}, s{sT+2}, {n2b}")
    g(f"s_mov_b32 s{sT+3}, {R*3584}"); g(f"s_cselect_b32 s{sT+3}, s{sT+3}, {R*3072}")
    g(f"s_cmp_eq_u32 s{sMH}, 0"); g(f"s_cselect_b32 s{sT+1}, s{sT+1}, s{sT+2}"); g(f"s_cselect_b32 s{sT+3}, 0, s{sT+3}"); g(f"s_cselect_b32 s{sSO}, 0, {OOB}")
    g(f"s_mul_i32 s{sT+2}, s{sT+1}, s2"); g(f"s_lshl_b32 s{sT+2}, s{sT+2}, 7"); g(f"s_add_u32 s{sT+2}, s{sT+2}, s{sT+3}")
    g(f"v_lshlrev_b32 v2, 7, v{L}"); g(f"v_add_u32 v2, s{sT+2}, v2"); g(f"v_mov_b32 v3, {OOB}"); g(f"v_cmp_gt_u32 vcc, s{sT+1}, v{L}")
    ng = (512 - R) // 64
    g(f"s_mul_i32 s{sGRP}, s2, {max(ng, 1)}"); g(f"s_lshr_b32 s{sGRP}, s{sGRP}, 8"); g(f"s_cmp_eq_u32 s{sMH}, 0"); g(f"s_cselect_b32 s{sGRP}, 99, s{sGRP}")
    g(f"v_cndmask_b32 v{vPFW}, v3, v2, vcc")
    g(f"s_cmp_eq_u32 s{sNH}, 0")
    g("s_waitcnt lgkmcnt(0)")
    g(f"s_cselect_b32 s{S_PF}, s12, s6"); g(f"s_cselect_b32 s{S_PF+1}, s13, s7"); g(f"s_mov_b32 s{S_PF+2}, {512*3072}"); g(f"s_cselect_b32 s{S_PF+2}, {512*3584}, s{S_PF+2}"); g(f"s_mov_b32 s{S_PF+3}, 0x00020000")
    for x in mksrd(S_X, 4, 2097152): g(x)
    if g.dbg: g(f"v_writelane_b32 v255, s{sST+2}, 17"); g(f"v_writelane_b32 v255, s{sNON}, 18")
    g.stamp(0)
    a = [V(f"buffer_load_dwordx4 {vr(vT)}, v{vSTR}, {srd4(S_X)}, 0 offen", "srow"), V(f"buffer_load_dwordx4 {vr(vT+4)}, v{vSTR}, {srd4(S_X)}, 0 offen offset:1024", "srow")]
    b = [V(f"buffer_load_dword v{vJUNK}, v{vPFW}, {srd4(S_PF)}, s{sSO} offen", "pf")]
    emit_all(g, b + a if O("wfirst", 0) else a + b)
    for x in mksrd(S_DBG, 22, 256): g(x)
    g(f"s_or_b32 s{sNON}, s{sNON}, 1")
    g(f"v_mov_b32 v2, s{sNON}"); g(f"v_mov_b32 v3, s{sNON+1}"); g("v_mov_b32 v4, 0"); g("v_mov_b32 v5, 0")
    g(f"v_or_b32 v6, s{sRANK}, v0"); g(f"v_mov_b32 v7, {OOB}")
    g("v_cmp_eq_u32 vcc, 0, v6"); g("s_nop 1"); g("v_cndmask_b32 v6, v7, v6, vcc")
    g.vmem(f"buffer_atomic_cmpswap_x2 v[2:5], v6, {srd4(S_DBG)}, 0 offen sc1", "nst")
    g(f"s_getpc_b64 s[{sT}:{sT+1}]")
    g("L_PCREF:")
    g(f"s_sub_u32 s{sT}, s{sT}, L_PCREF-L_START"); g(f"s_subb_u32 s{sT+1}, s{sT+1}, 0")
    g(f"v_and_b32 v8, 15, v0"); g(f"s_lshl_b32 s{sT+2}, s{sRANK}, 4"); g(f"v_add_u32 v8, s{sT+2}, v8")
    g("v_lshlrev_b32 v8, 7, v8"); g("v_min_u32 v8, L_CODE_END-L_START-4, v8")
    g.vmem(f"global_load_dword v{vJUNK}, v8, s[{sT}:{sT+1}]", "pf")
    g(f"s_cmp_eq_u32 s{sROLE}, 0"); g("s_cbranch_scc0 L_FFN")

def x_addr(g, role):
    L = vLANE
    g(f"v_lshrrev_b32 v2, 3, v{L}"); g(f"s_lshl_b32 s{sT}, s{sNH}, 3"); g(f"v_add_u32 v2, s{sT}, v2")
    g("v_lshrrev_b32 v3, 1, v2"); g(f"v_and_b32 v4, 7, v{L}"); g("v_xor_b32 v3, v3, v4"); g("v_lshlrev_b32 v3, 4, v3")
    g("v_lshl_add_u32 v4, v2, 11, v3")
    g(f"s_lshl_b32 s{sT}, s{sM}, 17")
    if role == 1:
        g(f"s_lshl_b32 s{sT+1}, s{sMH}, 10"); g(f"s_add_u32 s{sT}, s{sT}, s{sT+1}"); g(f"v_add_u32 v{vXD}, s{sT}, v4")
        for jj in range(1, 4): g(f"v_add_u32 v{vXD+jj}, {jj*32768}, v{vXD}")
        g(f"s_lshl_b32 s{sM0X}, s{sW}, 10")
    else:
        g(f"s_xor_b32 s{sT+1}, s{sMH}, 1"); g(f"s_lshl_b32 s{sT+1}, s{sT+1}, 10"); g(f"s_add_u32 s{sT+1}, s{sT}, s{sT+1}"); g(f"v_add_u32 v{vXD}, s{sT+1}, v4")
        for jj in range(1, 4): g(f"v_add_u32 v{vXD+jj}, {jj*32768}, v{vXD}")
        g(f"v_lshrrev_b32 v5, 3, v{L}"); g("v_lshlrev_b32 v5, 1, v5"); g(f"s_lshl_b32 s{sT+1}, s{sM}, 7"); g(f"s_add_u32 s{sT+1}, s{sT+1}, s{sNH}")
        g(f"s_sub_u32 s{sT+1}, s{sT+1}, 16"); g(f"v_add_u32 v5, s{sT+1}, v5"); g("v_max_i32 v5, 0, v5"); g("v_lshl_add_u32 v5, v5, 10, v3")
        g(f"s_lshl_b32 s{sHB}, s{sW}, 10"); g(f"s_cmp_eq_u32 s{sMH}, 0"); g(f"s_cselect_b32 s{sT+1}, 0, {OOB}"); g(f"s_cselect_b32 s{sHM}, 1, 0"); g(f"s_cselect_b32 s{sHB}, s{sHB}, {T_JUNK}")
        g(f"v_or_b32 v{vXD+4}, s{sT+1}, v5")
        g(f"s_xor_b32 s{sT+1}, s{sMH}, 1"); g(f"s_lshl_b32 s{sT+1}, s{sT+1}, 2"); g(f"s_add_u32 s{sT+1}, s{sT+1}, s{sW}"); g(f"s_lshl_b32 s{sM0X}, s{sT+1}, 10")

def w_addr(role):
    L = vLANE
    if role == 1:
        su = [f"s_mul_i32 s{sT}, s{sW}, {16*3584}", f"s_mul_i32 s{sT+1}, s{sN}, 448", f"s_add_u32 s{sT}, s{sT}, s{sT+1}", f"s_movk_i32 s{sT+2}, 9363", f"s_movk_i32 s{sT+3}, 3584",
              f"s_mul_i32 s{sM0W}, s{sW}, 7168", f"s_add_u32 s{sM0W}, s{sM0W}, 16384"]
        per = [[f"v_add_u32 v2, {jj*64}, v{L}", f"v_mul_u32_u24 v3, s{sT+2}, v2", "v_lshrrev_b32 v3, 18, v3", "v_mul_u32_u24 v4, 28, v3", "v_sub_u32 v4, v2, v4",
                "v_lshrrev_b32 v5, 2, v3", "v_and_b32 v5, 2, v5", "v_xor_b32 v4, v4, v5", f"v_mad_u32_u24 v3, v3, s{sT+3}, s{sT}".replace(f", s{sT+3}, s{sT}", f", s{sT+3}, v6"),
                f"v_lshl_add_u32 v{vWD+jj}, v4, 4, v3"] for jj in range(7)]
        su.append(f"v_mov_b32 v6, s{sT}")
    else:
        su = [f"s_mul_i32 s{sT}, s{sW}, {16*3072}", f"s_lshl_b32 s{sT+1}, s{sN}, 7", f"s_add_u32 s{sT}, s{sT}, s{sT+1}", f"s_movk_i32 s{sT+2}, 171", f"s_movk_i32 s{sT+3}, 3072",
              f"s_mul_i32 s{sM0W}, s{sW}, 6144", f"s_add_u32 s{sM0W}, s{sM0W}, 18432", f"v_lshrrev_b32 v9, 3, v{L}", f"v_and_b32 v7, 7, v{L}", f"v_mov_b32 v6, s{sT}"]
        per = [[f"v_add_u32 v2, {jj*8}, v9", f"v_mul_u32_u24 v3, s{sT+2}, v2", "v_lshrrev_b32 v3, 9, v3", "v_mul_u32_u24 v4, 3, v3", "v_sub_u32 v4, v2, v4",
                "v_and_b32 v5, 2, v3", "v_lshrrev_b32 v8, 1, v3", "v_and_b32 v8, 4, v8", "v_or3_b32 v5, v5, v8, 0", "v_xor_b32 v5, v5, v7",
                f"v_mad_u32_u24 v3, v3, s{sT+3}, v6", "v_lshl_add_u32 v3, v4, 10, v3", f"v_lshl_add_u32 v{vWD+jj}, v5, 4, v3"] for jj in range(6)]
    return su, per

def read_addr(g, role):
    L = vLANE
    g(f"v_and_b32 v2, 15, v{L}"); g(f"v_lshrrev_b32 v3, 4, v{L}")
    g("v_lshrrev_b32 v4, 1, v2"); g("v_xor_b32 v4, v4, v3"); g("v_lshlrev_b32 v4, 4, v4"); g("v_lshl_add_u32 v4, v2, 7, v4")
    if role == 1: g(f"s_lshl_b32 s{sT}, s{sMH}, 13"); g(f"v_add_u32 v4, s{sT}, v4")
    g("v_xor_b32 v5, 64, v4")
    for sl in range(3): g(f"v_add_u32 v{vXR+2*sl}, {sl*STG}, v4"); g(f"v_add_u32 v{vXR+2*sl+1}, {sl*STG}, v5")
    g("v_lshrrev_b32 v4, 2, v2"); g("v_lshl_add_u32 v4, v3, 3, v4"); g("v_and_b32 v5, 3, v2"); g("v_lshlrev_b32 v5, 3, v5")
    if role == 1:
        g(f"s_movk_i32 s{sT}, 448"); g(f"v_mad_u32_u24 v4, v4, s{sT}, v5")
        g("v_and_b32 v6, 1, v3"); g("v_lshlrev_b32 v6, 5, v6")
        g(f"s_lshl_b32 s{sT}, s{sNH}, 8"); g(f"v_add_u32 v7, s{sT}, v4")
        g("v_add_u32 v8, v7, v6"); g("v_sub_u32 v9, v7, v6")
        g("v_add_u32 v7, 192, v4"); g("v_add_u32 v7, v7, v6"); g("v_add_u32 v2, 224, v4"); g("v_sub_u32 v2, v2, v6")
        g(f"s_cmp_eq_u32 s{sNH}, 0"); g("s_cselect_b64 vcc, -1, 0"); g("s_nop 1"); g("v_cndmask_b32 v7, v2, v7, vcc")
        for sl in range(3):
            g(f"v_add_u32 v{vWR+3*sl}, {sl*STG+16384}, v8"); g(f"v_add_u32 v{vWR+3*sl+1}, {sl*STG+16384}, v9"); g(f"v_add_u32 v{vWR+3*sl+2}, {sl*STG+16384}, v7")
    else:
        g(f"s_movk_i32 s{sT}, 384"); g(f"v_mad_u32_u24 v4, v4, s{sT}, v5")
        g("v_lshrrev_b32 v6, 3, v2"); g("v_and_b32 v7, 1, v3"); g("v_lshl_or_b32 v6, v7, 1, v6"); g(f"v_xor_b32 v6, s{sW}, v6"); g("v_lshl_add_u32 v4, v6, 5, v4")
        for sl in range(3): g(f"v_add_u32 v{vWR+3*sl}, {sl*STG+18432}, v4")
        g(f"v_and_b32 v2, 7, v{L}"); g(f"v_cmp_eq_u32 s[{sH0}:{sH0+1}], 0, v2")
    for r in range(4): g(f"v_mov_b32 v{vONE+r}, 0x3f803f80")

def late_a(role):
    L = vLANE
    o = [I(x) for x in mksrd(S_WS, 24, WS_BYTES)]
    o += [I(f"v_mov_b32 v3, {OOB}"), I(f"s_lshl_b32 s{sT}, s{sA2}, 2"), I(f"s_add_u32 s{sT}, s{sT}, s{sW}"), I(f"s_lshl_b32 s{sT}, s{sT}, 4"), I(f"s_add_u32 s{sT}, s{sT}, {STATS}"),
          I(f"v_lshlrev_b32 v2, 3, v{L}"), I(f"v_add_u32 v2, s{sT}, v2"), sel(vSTS, f"v_cmp_gt_u32 vcc, 2, v{L}", "v2"),
          I(f"s_lshl_b32 s{sT}, s{sA2}, 7"), I(f"s_add_u32 s{sT}, s{sT}, {F1}"), I(f"v_mov_b32 v2, s{sT}"), sel(vF1S, "v_cmp_eq_u32 vcc, 0, v0", "v2")]
    o += [I(x) for x in mksrd(S_W2A, 16, 1792*1024)]
    o += [I(f"s_mul_i32 s{sB2A}, s{sW}, {18*32768}"), I(f"s_movk_i32 s{sT}, 0x200"),
          GRP(f"s_cmp_eq_u32 s{sW}, 3", f"s_cselect_b32 s{sB2B}, {(-2*32768) & 0xffffffff}, s{sB2A}", f"s_cselect_b32 s{S_W2B}, s8, s16", f"s_cselect_b32 s{S_W2B+1}, s9, s17",
              f"s_cselect_b32 s{S_W2B+2}, s{sT}, 1792"),
          I(f"s_lshl_b32 s{S_W2B+2}, s{S_W2B+2}, 10"), I(f"s_mov_b32 s{S_W2B+3}, 0x00020000"), I(f"s_movk_i32 s{sT}, 2048"),
          GRP(f"s_cmp_eq_u32 s{sW}, 3", f"s_cselect_b32 s{sT}, s{sT}, 7168", f"s_cselect_b32 s{sT+1}, 16, 0"),
          GRP(f"s_cmp_eq_u32 s{sW}, 0", f"s_cselect_b32 s{sT+1}, 56, s{sT+1}"), I(f"s_mul_i32 s{sT}, s{sT}, s2"),
          I(f"v_lshlrev_b32 v2, 7, v{L}"), I(f"v_add_u32 v2, s{sT}, v2"), sel(vPF2, f"v_cmp_gt_u32 vcc, s{sT+1}, v{L}", "v2")]
    return o
def late_b(role):
    L = vLANE
    o = [f"v_lshrrev_b32 v2, 4, v{L}", "v_lshlrev_b32 v2, 1, v2", f"v_and_b32 v4, 7, v{L}", "v_xor_b32 v2, v2, v4", "v_lshlrev_b32 v2, 4, v2",
         f"v_lshrrev_b32 v4, 3, v{L}", "v_lshl_add_u32 v2, v4, 10, v2", f"s_lshl_b32 s{sT}, s{sC2}, 7", f"v_add_u32 v{B2V[0]}, s{sT}, v2"]
    o += [f"v_add_u32 v{B2V[q]}, {q*7168}, v{B2V[0]}" for q in range(1, 4)]
    o += [f"s_lshl_b32 s{sM0B}, s{sW}, 12", f"s_mul_i32 s{sESM}, s{sW}, 6144", f"s_add_u32 s{sESM}, s{sESM}, {ESB}",
          f"v_and_b32 v2, 15, v{L}", f"v_lshrrev_b32 v3, 4, v{L}", "v_lshrrev_b32 v4, 2, v2", "v_lshl_add_u32 v4, v3, 2, v4", "v_lshrrev_b32 v5, 1, v4", "v_and_b32 v5, 3, v5",
          "v_and_b32 v6, 3, v2", "v_lshlrev_b32 v6, 3, v6", "v_lshl_add_u32 v6, v4, 7, v6"]
    for t in range(4):
        o += [f"v_xor_b32 v7, {t}, v5", "v_lshl_add_u32 v7, v7, 5, v6", f"v_add_u32 v{BR0[t]}, s{sM0B}, v7", f"v_add_u32 v{ESR[t]}, s{sESM}, v7",
              f"v_add_u32 v{BR1[t]}, 0x10000, v{BR0[t]}", f"v_add_u32 v{BR2[t]}, 0x20000, v{BR0[t]}"]
    return [I(x) for x in o]
def late_c(role):
    L = vLANE
    o = [I(f"v_mov_b32 v3, {OOB}"), I(f"v_and_b32 v2, 15, v{L}")]
    if role == 0:
        o += [I(f"v_subrev_u32 v4, 18, v{L}"), I(f"v_lshrrev_b32 v5, 1, v{L}"),
              GRP("v_cmp_eq_u32 vcc, 8, v5", f"s_cmp_eq_u32 s{sM}, 0", "s_cselect_b64 vcc, 0, vcc", "s_nop 1", "v_cndmask_b32 v2, v2, v4, vcc")]
    o += [I(x) for x in (f"s_lshl_b32 s{sT}, s{sM}, 4", f"v_add_u32 v2, s{sT}, v2", "v_lshlrev_b32 v2, 7, v2", f"v_add_u32 v2, {F1}, v2",
                         f"s_mov_b32 s{sMASK}, {0x3ffff if role == 0 else 0xffff}", f"s_mov_b32 s{sMASK+1}, 0", f"v_cndmask_b32 v{vF1P}, v3, v2, s[{sMASK}:{sMASK+1}]")]
    if role == 1:
        o += [I(x) for x in ("v_lshrrev_b32 v2, 5, v0", "v_lshlrev_b32 v2, 5, v2", "v_and_b32 v4, 15, v0", "v_lshl_add_u32 v2, v4, 1, v2", "v_bfe_u32 v4, v0, 4, 1", "v_add_u32 v2, v2, v4",
                             f"s_lshl_b32 s{sT}, s{sM}, 7", f"v_add_u32 v2, s{sT}, v2", "v_lshlrev_b32 v2, 3, v2", f"v_add_u32 v2, {STATS}, v2")]
        o += [sel(vGS, "v_cmp_gt_u32 vcc, 0x80, v0", "v2"), I(f"s_mul_i32 s{sT}, s{sN}, 448"), I("v_lshlrev_b32 v2, 1, v0"), I(f"v_add_u32 v2, s{sT}, v2"), sel(vGB, "v_cmp_gt_u32 vcc, 0xe0, v0", "v2")]
        o += [I(x) for x in mksrd(S_BI, 14, 3584)]
    else:
        o += [I(x) for x in ("v_subrev_u32 v5, 16, v0", "v_lshrrev_b32 v2, 5, v5", "v_lshlrev_b32 v2, 5, v2", "v_and_b32 v4, 15, v5", "v_lshl_add_u32 v2, v4, 1, v2", "v_bfe_u32 v4, v5, 4, 1",
                             "v_add_u32 v2, v2, v4", "v_and_b32 v4, 7, v0", "v_lshlrev_b32 v4, 1, v4", "v_bfe_u32 v5, v0, 3, 1", "v_add_u32 v4, v4, v5", "v_subrev_u32 v4, 16, v4")]
        o += [GRP("v_cmp_gt_u32 vcc, 16, v0", "s_nop 1", "v_cndmask_b32 v2, v2, v4, vcc")]
        o += [I(x) for x in (f"s_lshl_b32 s{sT}, s{sM}, 7", f"v_add_u32 v2, s{sT}, v2", "v_max_i32 v2, 0, v2", "v_lshlrev_b32 v2, 3, v2", f"v_add_u32 v2, {STATS}, v2")]
        o += [sel(vGS, "v_cmp_gt_u32 vcc, 0x90, v0", "v2")]
    o += [I(f"v_lshlrev_b32 v{vTID4}, 2, v0")]
    o += [I(x) for x in mksrd(S_OUT, 20, 2097152)]
    return o
def late_d(role):
    L = vLANE
    o = [f"v_lshrrev_b32 v2, 4, v{L}", "v_lshlrev_b32 v2, 4, v2", f"v_and_b32 v4, 15, v{L}", "v_lshlrev_b32 v4, 3, v4"]
    if role == 1:
        o += [f"s_mul_i32 s{sT}, s{sW}, 448", f"s_add_u32 s{sT}, s{sT}, {T_CS}", f"v_add_u32 v{vE}, s{sT}, v2",
              f"s_xor_b32 s{sT}, s{sW}, 2", f"s_mul_i32 s{sT}, s{sT}, 448", f"s_add_u32 s{sT}, s{sT}, {T_CS}", f"v_add_u32 v{vE+1}, s{sT}, v2",
              f"s_lshl_b32 s{sT}, s{sNH}, 9", f"s_add_u32 s{sT}, s{sT}, {T_B1}", f"v_add_u32 v{vE+2}, s{sT}, v2",
              f"s_lshl_b32 s{sT}, s{sNH}, 6", f"s_add_u32 s{sT}, s{sT}, {T_B1+384}", f"v_add_u32 v{vE+3}, s{sT}, v2",
              f"s_lshl_b32 s{sT}, s{sMH}, 9", f"s_add_u32 s{sT}, s{sT}, {T_P}", f"v_add_u32 v{vE+4}, s{sT}, v4",
              f"s_lshl_b32 s{sT}, s{sM}, 1", f"s_add_u32 s{sT}, s{sT}, s{sMH}", f"s_mul_i32 s{sT}, s{sT}, 72", f"s_mul_i32 s{sT+1}, s{sN}, 7", f"s_add_u32 s{sT}, s{sT}, s{sT+1}", f"s_lshl_b32 s{sT}, s{sT}, 12",
              f"s_lshl_b32 s{sE1}, s{sNH}, 14", f"s_add_u32 s{sE1}, s{sE1}, s{sT}", f"s_lshl_b32 s{sE2}, s{sNH}, 10", f"s_add_u32 s{sE2}, s{sE2}, s{sT}", f"s_add_u32 s{sE2}, s{sE2}, {3*4096}"]
    else:
        o += [f"v_add_u32 v{vE}, {T_P}, v4", f"v_add_u32 v{vE+1}, {T_M}, v2",
              f"s_mul_i32 s{sE1}, s{sM}, 144", f"s_lshl_b32 s{sT}, s{sN}, 1", f"s_add_u32 s{sE1}, s{sE1}, s{sT}", f"s_add_u32 s{sE1}, s{sE1}, s{sMH}", f"s_add_u32 s{sE1}, s{sE1}, 56",
              f"s_lshl_b32 s{sE1}, s{sE1}, 12", f"s_lshl_b32 s{sT}, s{sNH}, 10", f"s_add_u32 s{sE1}, s{sE1}, s{sT}"]
    o += [f"v_and_b32 v4, 15, v{L}", f"v_lshrrev_b32 v5, 4, v{L}",
          f"s_lshl_b32 s{sT}, s{sRT2}, 6", f"s_lshl_b32 s{sT+1}, s{sMH}, 5", f"s_add_u32 s{sT}, s{sT}, s{sT+1}", f"s_add_u32 s{sT}, s{sT}, s{sNH}", f"s_lshl_b32 s{sT}, s{sT}, 10",
          f"s_lshl_b32 s{sT+1}, s{sC2}, 7", f"s_add_u32 s{sT}, s{sT}, s{sT+1}",
          "v_lshlrev_b32 v4, 11, v4", "v_and_b32 v6, 1, v5", "v_lshl_add_u32 v4, v6, 5, v4", "v_lshrrev_b32 v6, 1, v5", "v_lshl_add_u32 v4, v6, 4, v4", f"v_add_u32 v{vE+6}, s{sT}, v4",
          "v_lshlrev_b32 v5, 3, v5", f"v_add_u32 v{vG+1}, s{sT+1}, v5"] + mksrd(S_DBG, 18, 1024)
    o = [I(x) for x in o]
    o += [I(f"s_lshl_b32 s{sT}, s{sA2}, 2"), I(f"s_add_u32 s{sT}, s{sT}, s{sW}"), I(f"s_lshl_b32 s{sT}, s{sT}, 7"), I(f"s_add_u32 s{sT}, s{sT}, {F2}"),
          I(f"v_mov_b32 v2, s{sT}"), I(f"v_mov_b32 v3, {OOB}"), sel(vE+5, f"v_cmp_eq_u32 vcc, 0, v{L}", "v2")]
    return o

def ring_dmas(role, s):
    slot = (s % 3) * STG; wrow = 64 * (3584 if role == 1 else 3072); tag = f"st{s}"
    pre = [I(f"s_movk_i32 s{sXO}, {s*128}"), I(f"s_mov_b32 s{sWO}, {s*wrow}")]
    if O("rot", 0): pre = [I(f"s_add_u32 s{sWO}, s{sROT}, {s}"), I(f"s_and_b32 s{sWO}, s{sWO}, 7"), I(f"s_lshl_b32 s{sXO}, s{sWO}, 7"), I(f"s_mul_i32 s{sWO}, s{sWO}, {wrow}")]
    out = [("d", [I(f"s_add_u32 m0, s{sM0X}, {slot + jj*4096}")], V(f"buffer_load_dwordx4 v{vXD+jj}, {srd4(S_X)}, s{sXO} offen lds", tag)) for jj in range(4)]
    if role == 0:
        out.append(("d", [I(f"s_mul_i32 m0, s{sHM}, {slot}"), I(f"s_add_u32 m0, m0, s{sHB}")], V(f"buffer_load_dwordx4 v{vXD+4}, {srd4(S_X)}, s{sXO} offen lds", tag)))
    out += [("d", [I(f"s_add_u32 m0, s{sM0W}, {slot + jj*1024}")], V(f"buffer_load_dwordx4 v{vWD+jj}, {srd4(S_W)}, s{sWO} offen lds", tag)) for jj in range(7 if role == 1 else 6)]
    out[0] = ("d", pre + out[0][1], out[0][2])
    return out

def fx(role, b, T):
    if role == 1: return ar(44*b + 4*T)
    return vr(vHX + 4*b) if T == 0 else ar(48*b + 4*(T-1))
def fwb(role, b, t): return (44*b + 16 + 4*t) if role == 1 else (48*b + 32 + 4*t)
def fw(role, b, t): return ar(fwb(role, b, t))
def frag_reads(role, s, kk, b):
    sl = s % 3; xs = []; ws = []
    if role == 1:
        for T in range(4): xs.append(I(f"ds_read_b128 {fx(1,b,T)}, v{vXR+2*sl+kk} offset:{T*2048}"))
        for tt in range(7):
            reg = vWR + 3*sl + (2 if tt == 6 else (tt & 1)); off = kk*14336 + (0 if tt == 6 else 32*tt)
            for h in range(2): ws.append(I(f"ds_read_b64_tr_b16 {ar(fwb(1,b,tt)+2*h, 2)}, v{reg} offset:{off + h*1792}"))
    else:
        for T in range(9): xs.append(I(f"ds_read_b128 {fx(0,b,T)}, v{vXR+2*sl+kk} offset:{T*2048}"))
        for sg in range(3):
            for h in range(2): ws.append(I(f"ds_read_b64_tr_b16 {ar(fwb(0,b,sg)+2*h, 2)}, v{vWR+3*sl} offset:{kk*12288 + h*1536 + sg*128}"))
    return [it for _, it in merge((xs, 0, 1), (ws, 0, 1))]
def accF(rt, tt): return vACC + 4*(7*rt + tt)
def accQ(T): return vACC + 4*T
def accK(T): return vACC + 36 + 4*T
def accV(T): return vACC + 72 + 4*T
def kstep_mfmas(role, b, first):
    out = []
    if role == 1:
        for rt in range(4):
            for tt in range(7):
                d = vr(accF(rt, tt)); out.append(mfma(d, fw(1,b,tt), fx(1,b,rt), "0" if first else d))
    else:
        for T in list(range(1, 9)) + [0]:
            for nm, acc in (("q", accQ), ("k", accK), ("v", accV)):
                d = vr(acc(T)); c = "0" if first else d
                out.append(mfma(d, fx(0,b,T), fw(0,b,2), c) if nm == "v" else mfma(d, fw(0,b,0 if nm == "q" else 1), fx(0,b,T), c))
    return out

def stats_stream():
    t = vT; o = []; a = lambda x: o.append(I(x))
    S = [t+8, t+10]; Q = [t+9, t+11]; u = t+12
    for r in range(2):
        for j in range(4):
            src = t + 4*r + j
            a(f"v_lshlrev_b32 v{u}, 16, v{src}"); a(f"v_and_b32 v{u+1}, 0xffff0000, v{src}")
            if j == 0: a(f"v_add_f32 v{S[r]}, v{u}, v{u+1}"); a(f"v_mul_f32 v{Q[r]}, v{u}, v{u}")
            else: a(f"v_add_f32 v{S[r]}, v{S[r]}, v{u}"); a(f"v_fmac_f32 v{Q[r]}, v{u}, v{u}"); a(f"v_add_f32 v{S[r]}, v{S[r]}, v{u+1}")
            a(f"v_fmac_f32 v{Q[r]}, v{u+1}, v{u+1}")
    regs = [S[0], Q[0], S[1], Q[1]]
    a("s_nop 1")
    for dpp in ("quad_perm:[1,0,3,2]", "quad_perm:[2,3,0,1]", "row_half_mirror", "row_mirror"):
        for r in regs: a(f"v_add_f32_dpp v{r}, v{r}, v{r} {dpp} row_mask:0xf bank_mask:0xf")
    for sw in ("v_permlane16_swap_b32", "v_permlane32_swap_b32"):
        for k, r in enumerate(regs): a(f"v_mov_b32 v{u+k}, v{r}")
        a("s_nop 1")
        for k, r in enumerate(regs): a(f"{sw} v{r}, v{u+k}")
        for k, r in enumerate(regs): a(f"v_add_f32 v{r}, v{r}, v{u+k}")
    o.append(GRP(f"v_cmp_eq_u32 vcc, 0, v{vLANE}", "s_nop 1", f"v_cndmask_b32 v{u}, v{S[1]}, v{S[0]}, vcc", f"v_cndmask_b32 v{u+1}, v{Q[1]}, v{Q[0]}, vcc"))
    a(f"v_mul_f32 v{u}, 0x3b000000, v{u}"); a(f"v_mul_f32 v{u+1}, 0x3b000000, v{u+1}")
    a(f"v_fma_f32 v{u+1}, -v{u}, v{u}, v{u+1}"); a(f"v_max_f32 v{u+1}, 0, v{u+1}")
    a(f"v_cvt_pk_bf16_f32 v{u+2}, v{u}, v{u+1}")
    a(f"v_lshlrev_b32 v{u}, 16, v{u+2}"); a(f"v_and_b32 v{u+1}, 0xffff0000, v{u+2}")
    a(f"v_add_f32 v{u+1}, 0x3727c5ac, v{u+1}")
    a(f"v_cvt_pk_bf16_f32 v{u+2}, v{u+1}, v{u+1}"); a(f"v_and_b32 v{u+1}, 0xffff0000, v{u+2}")
    a(f"v_sqrt_f32 v{u+1}, v{u+1}"); a("s_nop 0")
    a(f"v_cvt_pk_bf16_f32 v{u+2}, v{u+1}, v{u+1}"); a(f"v_and_b32 v{u+1}, 0xffff0000, v{u+2}")
    a(f"v_rcp_f32 v{t+21}, v{u+1}"); a(f"v_xor_b32 v{t+20}, 0x80000000, v{u}"); a("s_nop 0")
    o.append(V(f"buffer_store_dwordx2 v[{t+20}:{t+21}], v{vSTS}, {srd4(S_WS)}, 0 offen sc1", "sst"))
    return o

def plan():
    ne = O("esE", 0) // 2
    first = [6, 7, 8, 0, 1, 2, 3, 4, 5]
    steps = list(range(ne, 18)); batch = {}
    for j in steps[:9]: batch[j] = first[j - ne]
    freed = [batch[j] for j in range(ne, 8)]
    for j, b in zip(steps[9:], freed + [9]): batch[j] = b
    assert batch[17] == 9 and len(set(batch[j] for j in range(8, 18))) == 10
    return ne, batch
def bsrc(j): return (S_W2A, sB2A) if j < 2 else (S_W2B, sB2B)
def unit(j):
    srd, sb = bsrc(j); batch = plan()[1][j]; out = []
    for q in range(4):
        ld = V(f"buffer_load_dwordx4 v{B2V[q]}, {srd4(srd)}, s{sSO+1} offen offset:{q*1024} lds", f"u{j}")
        out.append(("d", [I(f"s_add_u32 s{sSO+1}, s{sb}, {j*32768}"), I(f"s_add_u32 m0, s{sM0B}, {batch*16384}")], ld) if q == 0 else ld)
    return out
def es_dma(e):
    j, h = e >> 1, e & 1; srd, sb = bsrc(j); out = []
    for q in (2*h, 2*h+1):
        out.append(("d", [I(f"s_add_u32 s{sSO+1}, s{sb}, {j*32768}"), I(f"s_add_u32 m0, s{sESM}, {((e % 3)*2048 - h*2048) & 0xffffffff}")],
                    V(f"buffer_load_dwordx4 v{B2V[q]}, {srd4(srd)}, s{sSO+1} offen offset:{q*1024} lds", f"e{e}")))
    return out
def es_move(e):
    j, h = e >> 1, e & 1
    return [("w", f"e{e}")] + [I(f"ds_read_b64_tr_b16 {ar(128+16*j+4*t+2*h, 2)}, v{ESR[t]} offset:{(e % 3)*2048}") for t in range(4)]
def tr_addr(batch, t, h):
    off = batch*16384 + h*2048
    return f"v{(BR0, BR1, BR2)[off >> 16][t]} offset:{off & 0xffff}"
def moves(j): return [I(f"ds_read_b64_tr_b16 {ar(128+16*j+4*t+2*h, 2)}, {tr_addr(plan()[1][j], t, h)}") for t in range(4) for h in range(2)]

def spin(g, name, voff, res, mask=None):
    lab = g.label(name)
    g(f"{lab}:")
    g(f"v_cmp_ne_u64 vcc, s[{sNON}:{sNON+1}], v[{res}:{res+1}]")
    if mask: g(f"s_and_b64 vcc, vcc, s[{mask}:{mask+1}]")
    g(f"s_cbranch_vccz {lab}_ok")
    if g.dbg and name == "SP2": g("s_add_u32 s101, s101, 1")
    g("s_sleep 1")
    g(f"buffer_load_dwordx2 v[{res}:{res+1}], v{voff}, {srd4(S_WS)}, 0 offen sc1")
    g("s_waitcnt vmcnt(0)")
    g(f"s_branch {lab}")
    g(f"{lab}_ok:")

def p1(g, role, vm0):
    g.vm = list(vm0)
    L = vLANE
    x_addr(g, role)
    su, per = w_addr(role)
    for x in su + sum(per, []) + mksrd(S_W, 12 if role == 1 else 6, 512*3584 if role == 1 else 512*3072): g(x)
    def pfw(i): return GRP(f"s_cmp_eq_u32 s{sGRP}, {i}", f"s_cselect_b32 s{sSO}, 0, {OOB}", V(f"buffer_load_dword v{vJUNK}, v{vPFW}, {srd4(S_PF)}, s{sSO} offen", "pf"))
    d0 = ring_dmas(role, 0); d1 = ring_dmas(role, 1); n0e = O("n0e", 2); n1 = O("n1", 7)
    emit_all(g, d0[:n0e])
    read_addr(g, role)
    emit_all(g, late_a(role) + late_c(role) + late_b(role) + (qkv_consts() if role == 0 else []))
    g(f"v_mov_b32 v8, 0"); g(f"v_mov_b32 v3, {OOB}"); emit(g, sel(8, f"v_cmp_eq_u32 vcc, 0, v{L}", "v8"))
    emit_all(g, d0[n0e:])
    g.wait_vm("srow")
    stt = stats_stream() + [V(f"buffer_load_dwordx2 v[{vNON}:{vNON+1}], v8, {srd4(S_DBG)}, 0 offen", "nonce")] + late_d(role)
    emit_all(g, [it for _, it in merge((stt, 0, 1), (d1[:n1], O("d1lo", 30)/100, 1))])
    g.wait_vm(["st0", "sst", "nonce"])
    lab = g.label("NON")
    g(f"{lab}:"); g(f"v_readfirstlane_b32 s{sNON}, v{vNON}"); g(f"v_readfirstlane_b32 s{sNON+1}, v{vNON+1}"); g("s_nop 3")
    g(f"s_cmp_lg_u32 s{sNON}, 0"); g(f"s_cbranch_scc1 {lab}_ok")
    for x in mksrd(S_W2A, 22, 256): g(x)
    g(f"buffer_load_dwordx2 v[{vNON}:{vNON+1}], v8, {srd4(S_W2A)}, 0 offen sc1"); g("s_waitcnt vmcnt(0)")
    for x in mksrd(S_W2A, 16, 1792*1024): g(x)
    g(f"s_branch {lab}"); g(f"{lab}_ok:")
    g("s_barrier")
    g.stamp(1)
    emit_all(g, frag_reads(role, 0, 0, 0))

    class K: pass
    ks = []
    for n in range(16):
        k = K(); k.tags = []; k.head = []; k.dma = []; k.side = []; ks.append(k)
    xres = [V(f"buffer_load_dwordx4 {ar(96)}, v{vE+6}, {srd4(S_X)}, 0 offen", "xres"), V(f"buffer_load_dwordx4 {ar(100)}, v{vE+6}, {srd4(S_X)}, 0 offen offset:64", "xres")]
    xres += [V(f"buffer_load_dwordx2 {ar(104+2*t, 2)}, v{vG+1}, {srd4(S_DBG)}, 0 offen offset:{32*t}", "xres") for t in range(4)]
    if role == 1: xres.append(V(f"buffer_load_ushort v57, v{vGB}, {srd4(S_BI)}, 0 offen", "xres"))
    ks[0].dma = d1[n1:] + ring_dmas(role, 2)
    ne, batch = plan()
    for s in range(8):
        if s + 3 < 8: nxt = ring_dmas(role, s+3)
        elif s == 5: nxt = unit(ne) + unit(ne+1) + unit(ne+2)
        elif s == 6: nxt = unit(ne+3) + unit(ne+4)
        else: nxt = unit(ne+5) + unit(ne+6)[:2]
        h = (len(nxt) + 1) // 2 if s < 7 else len(nxt)
        ks[2*s+1].dma += nxt[:h]
        if s < 7: ks[2*s+2].dma += nxt[h:]; ks[2*s+1].tags.append(f"st{s+1}")
    ng = (512 - O("R", 512)) // 64
    for i in range(ng):
        ks[max(0, 2*(5-ng+i) - O("gl", 2))].dma.append(pfw(i))
    for i in range(3):
        ks[O("pf2k", 2) + 2*i].dma.append(GRP(f"s_mul_i32 s{sSO}, s2, 3", f"s_lshr_b32 s{sSO}, s{sSO}, 8", f"s_cmp_eq_u32 s{sSO}, {i}", f"s_cselect_b32 s{sSO}, 0, {OOB}",
                                              V(f"buffer_load_dword v{vJUNK}, v{vPF2}, {srd4(S_W2B)}, s{sSO} offen", "pf2")))
    ks[10].dma += xres
    ks[0].head = [GRP(f"v_mov_b32 v8, s{sNON}", f"v_mov_b32 v9, s{sNON+1}", V(f"buffer_store_dwordx2 v[8:9], v{vF1S}, {srd4(S_WS)}, 0 offen sc1", "f1"))]
    n0 = O("esn0", 5)
    for e in range(2*ne):
        dd = ks[n0+e].dma; x = es_dma(e)
        ks[n0+e].dma = x[:1] + dd[:len(dd)//2] + x[1:] + dd[len(dd)//2:]
        assert n0 + e + 2 <= 10
        ks[n0+e+2].side.append((es_move(e), 0.0, 0.3))
    ks[11].head = [V(f"buffer_load_dwordx2 v[{vNON}:{vNON+1}], v{vF1P}, {srd4(S_WS)}, 0 offen sc1", "poll1")]
    ks[13].tags.append("poll1")
    ks[13].head = [V(f"buffer_load_dwordx2 v[{vG}:{vG+1}], v{vGS}, {srd4(S_WS)}, 0 offen sc1", "gath")]
    ks[15].tags.append("gath")
    ks[15].head = [I(f"v_lshlrev_b32 v2, 1, v{vTID4}"), I(f"v_add_u32 v2, {TBL}, v2"), I(f"v_add_u32 v3, {TBL}, v{vTID4}"), I(f"ds_write_b64 v2, v[{vG}:{vG+1}]")]
    if role == 1: ks[15].head += [I("v_lshlrev_b32 v57, 16, v57"), I(f"ds_write_b32 v3, v57 offset:{T_B1-TBL}")]
    else: ks[15].head += [I(f"ds_write_b32 v3, v{vG} offset:{T_M-TBL}"), I(f"ds_write_b32 v3, v{vG+1} offset:{T_R-TBL}")]
    mv = [j for j in (ne, ne+1, ne+2) if j < 8]
    ks[15].side.append((sum([moves(j) for j in mv], []), 0.1, 0.9))

    for n in range(16):
        s, kk = n >> 1, n & 1; b = kk; k = ks[n]
        g("s_waitcnt lgkmcnt(0)")
        if kk == 1:
            g.wait_vm(k.tags)
            if n == 13: spin(g, "SP1", vF1P, vNON, sMASK)
            g("s_barrier")
            g.stamp(2+s)
        streams = []
        if n < 15: streams.append((frag_reads(role, (n+1) >> 1, (n+1) & 1, 1-b), 0.0, 0.8))
        if k.head: streams.append((k.head, 0.0, 0.05))
        if k.dma: streams.append((k.dma, 0.05, 1.0))
        if role == 0: streams.append(([I(f"v_cndmask_b32 v{vHX+4*b+r}, v{vHX+4*b+r}, v{vONE}, s[{sH0}:{sH0+1}]") for r in range(4)], 0.1, 0.5))
        streams += [x for x in k.side if x[0]]
        interleave(g, kstep_mfmas(role, b, n == 0), merge(*streams))
        if role == 1:
            lab = g.label("ONES")
            g(f"s_cmp_eq_u32 s{sMH}, {kk}"); g(f"s_cbranch_scc0 {lab}")
            for tt in range(7):
                d = vr(vCS + 4*tt); g(mfma(d, fw(1,b,tt), vr(vONE), "0" if s == 0 else d))
            g(f"{lab}:")
    rest = unit(ne+6)[2:] + unit(ne+7) + unit(ne+8)
    nxt_l = ne + 9
    def after_moves(js):
        nonlocal nxt_l
        o = []
        for j in js: o += unit(nxt_l); nxt_l += 1
        return o
    rest += after_moves(mv)
    for grp_ in ([j for j in (ne+3, ne+4) if j < 8], [j for j in range(ne+5, 8)]):
        if grp_: rest += [("g", [("w", f"u{grp_[-1]}")] + sum([moves(j) for j in grp_], []) + [I("s_waitcnt lgkmcnt(0)")])] + after_moves(grp_)
    assert nxt_l == 17
    g.rest = rest
    (epi_ffn if role == 1 else epi_qkv)(g)
    handoff(g)

PK_LO = "op_sel:[0,0,0] op_sel_hi:[1,0,1]"
PK_HI = "op_sel:[0,1,0] op_sel_hi:[1,1,1]"
def bg(g, n=1):
    for _ in range(n):
        if g.rest: emit(g, g.rest.pop(0))

def epi_ffn(g):
    g("s_mov_b32 exec_lo, 0x00010001"); g("s_mov_b32 exec_hi, 0x00010001")
    g("s_nop 6")
    for tt in range(7): g(f"ds_write_b128 v{vE}, {vr(vCS+4*tt)} offset:{64*tt}")
    g("s_mov_b64 exec, -1")
    g("s_waitcnt lgkmcnt(0)"); g("s_barrier")
    g.stamp(10)
    B1, PS, CP = 10, 2, 204
    for tt in range(7): g(f"ds_read_b128 {vr(CP+4*tt)}, v{vE+1} offset:{64*tt}")
    for rt in range(4): g(f"ds_read_b64 {pr(PS+2*rt)}, v{vE+4} offset:{128*rt}")
    for tt in range(7): g(f"ds_read_b128 {vr(B1+4*tt)}, v{vE+3 if tt == 6 else vE+2} offset:{0 if tt == 6 else 64*tt}")
    bg(g, O("nb0", 2))
    g("s_waitcnt lgkmcnt(7)")
    for i in range(14): g(f"v_pk_add_f32 {pr(vCS+2*i)}, {pr(vCS+2*i)}, {pr(CP+2*i)}")
    g("s_waitcnt lgkmcnt(0)"); g("s_barrier")
    Q = [38, 42, 46]; LQ = 50; qi = 0
    def tile(rt, tt, dst):
        a = accF(rt, tt); P = pr(PS+2*rt); o = []
        for h in range(2): o.append(f"v_pk_fma_f32 {pr(a+2*h)}, {pr(vCS+4*tt+2*h)}, {P}, {pr(a+2*h)} {PK_LO}")
        for h in range(2): o.append(f"v_pk_fma_f32 {pr(a+2*h)}, {pr(a+2*h)}, {P}, {pr(B1+4*tt+2*h)} {PK_HI}")
        for r in range(4): o.append(f"v_max_f32 v{a+r}, 0, v{a+r}")
        for h in range(2): o.append(f"v_pk_mul_f32 {pr(a+2*h)}, {pr(a+2*h)}, {pr(a+2*h)}")
        for h in range(2): o.append(f"v_cvt_pk_bf16_f32 v{dst+h}, v{a+2*h}, v{a+2*h+1}")
        return o
    for rt in range(4):
        for pp in range(3):
            q = Q[qi % 3]; qi += 1
            g(f"s_add_u32 s{sSO}, s{sE1}, {pp*4096 + rt*1024}")
            for x, y in zip(tile(rt, 2*pp, q), tile(rt, 2*pp+1, q+2)): g(x); g(y)
            g.vmem(f"buffer_store_dwordx4 {vr(q)}, v{vA2S}, {srd4(S_WS)}, s{sSO} offen sc1", "a2")
            if not (rt == 3 and pp == 2): bg(g, O("nb2", 0))
        lq = LQ + 4*(rt >> 1)
        if rt & 1: g(f"s_add_u32 s{sSO}, s{sE2}, {(rt >> 1)*2048}")
        for x in tile(rt, 6, lq + 2*(rt & 1)): g(x)
        if rt & 1: g.vmem(f"buffer_store_dwordx4 {vr(lq)}, v{vA2S}, {srd4(S_WS)}, s{sSO} offen sc1", "a2")
    g.stamp(11)

QBO, QBP, QBE, QBH, QMK = 172, 176, 180, 184, 188
def qkv_consts():
    L = vLANE; NEG = 0xf149f2ca
    o = [I(f"v_and_b32 v5, 15, v{L}"), I(f"v_lshrrev_b32 v4, 4, v{L}"), I("v_lshlrev_b32 v4, 2, v4"), I("v_sub_u32 v5, v5, v4"), I(f"v_mov_b32 v6, {NEG}"),
         GRP(f"s_cmp_eq_u32 s{sM}, 0", "s_cselect_b64 s[76:77], 0, -1", "s_cselect_b32 s74, 0, -1"), I("s_mov_b32 s75, 0")]
    for r in range(4):
        o += [I(f"v_subrev_u32 v7, {r}, v5"),
              GRP("v_cmp_gt_u32 vcc, 8, v7", "s_nop 1", f"v_cndmask_b32 v{QBO+r}, v6, 0, vcc"),
              GRP("v_cmp_ge_i32 vcc, -9, v7", "s_nop 1", f"v_cndmask_b32 v{QBP+r}, v6, 0, vcc", "s_and_b64 vcc, vcc, s[76:77]", "s_nop 1", f"v_cndmask_b32 v{QBH+r}, v6, 0, vcc"),
              GRP("v_cmp_gt_i32 vcc, 0, v7", f"v_mov_b32 v2, {0xffff if r % 2 == 0 else 0xffff0000}", "s_nop 0", "v_cndmask_b32 v2, v2, 0, vcc",
                  "s_and_b64 vcc, vcc, s[74:75]", "s_nop 1", f"v_cndmask_b32 v{QBE+r}, v6, 0, vcc"),
              I(f"v_mov_b32 v{QMK + r//2}, v2" if r % 2 == 0 else f"v_or_b32 v{QMK + r//2}, v{QMK + r//2}, v2")]
    return o

def epi_qkv(g):
    BO, BP, BE, BH, MK = QBO, QBP, QBE, QBH, QMK
    g("s_waitcnt lgkmcnt(0)"); g("s_barrier")
    g.stamp(10)
    PS, MR, CQ, CK, CV = 10, 190, 28, 32, 36
    QP, KP = 206, 2
    def kp(T): return 222 + 2*T if T < 5 else 2 + 2*(T - 5)
    VE, VO, ONE = 38, 48, 160
    for T in range(9): g(f"ds_read_b64 {pr(PS+2*T)}, v{vE} offset:{128*T}")
    def mr_read(T):
        o = MR + 8*(T & 1)
        g(f"ds_read_b128 {vr(o)}, v{vE+1} offset:{64*T}"); g(f"ds_read_b128 {vr(o+4)}, v{vE+1} offset:{64*T + 1024}")
    mr_read(0); mr_read(1)
    for r in range(4):
        g(f"v_mov_b32_dpp v{CQ+r}, v{accQ(0)+r} row_newbcast:0 row_mask:0xf bank_mask:0xf")
        g(f"v_mov_b32_dpp v{CK+r}, v{accK(0)+r} row_newbcast:0 row_mask:0xf bank_mask:0xf")
    g(f"v_mov_b32 v{CV}, v{accV(0)}"); g(f"v_mov_b32 v{CV+1}, v{accV(0)}"); g(f"s_mov_b32 s{sT+4}, 0x3eb8aa3b"); g("s_waitcnt lgkmcnt(4)")
    g(f"v_permlane16_swap_b32 v{CV}, v{CV+1}")
    def qk(acc, cs, T, dst):
        o = []; P = pr(PS+2*T)
        for h in range(2): o.append(f"v_pk_fma_f32 {pr(acc+2*h)}, {pr(cs+2*h)}, {P}, {pr(acc+2*h)} {PK_LO}")
        for h in range(2): o.append(f"v_pk_mul_f32 {pr(acc+2*h)}, {pr(acc+2*h)}, {P} op_sel:[0,1] op_sel_hi:[1,1]")
        for h in range(2): o.append(f"v_cvt_pk_bf16_f32 v{dst+h}, v{acc+2*h}, v{acc+2*h+1}")
        return o
    for T in range(9):
        k = qk(accK(T), CK, T, kp(T)); q = qk(accQ(T), CQ, T, QP + 2*(T-1)) if T else []
        bg(g)
        for i in range(6):
            g(k[i])
            if q: g(q[i])
    def vdst(T): return VE if T == 0 else ((VE if T & 1 else VO) + 2*((T+1)//2))
    for T in range(9):
        g(f"s_waitcnt lgkmcnt({2 if T < 8 else 0})")
        o = MR + 8*(T & 1); a = accV(T)
        for h in range(2): g(f"v_pk_fma_f32 {pr(a+2*h)}, {pr(o+2*h)}, {pr(CV)}, {pr(a+2*h)} {PK_LO}")
        for h in range(2): g(f"v_pk_mul_f32 {pr(a+2*h)}, {pr(a+2*h)}, {pr(o+4+2*h)}")
        if T + 2 < 9: mr_read(T+2)
        if T & 1: bg(g)
        for h in range(2): g(f"v_cvt_pk_bf16_f32 v{vdst(T)+h}, v{a+2*h}, v{a+2*h+1}")
    g("s_barrier")
    g(f"v_mov_b32 v{VO}, v{VE}"); g(f"v_mov_b32 v{VO+1}, v{VE+1}")
    for r in range(4): g(f"v_mov_b32 v{ONE+r}, 0x3f803f80")
    def regs(hf): b = 64 + 48*hf; return b, b+16, b+32, b+36
    def s_mfma(hf):
        SO, SP, MX, _ = regs(hf)
        for x in range(4):
            T = 4*hf + 1 + x; prev = 0 if T <= 2 else T - 2; bias = BE if T == 1 else (BH if T == 2 else BP)
            g(f"v_mfma_f32_16x16x16_bf16 {vr(SO+4*x)}, {pr(kp(T))}, {pr(QP+2*(T-1))}, {vr(BO)}")
            g(f"v_mfma_f32_16x16x16_bf16 {vr(SP+4*x)}, {pr(kp(prev))}, {pr(QP+2*(T-1))}, {vr(bias)}")
    def both(f):
        a_, b_ = f(0), f(1)
        for x, y in zip(a_, b_): g(x); g(y)
    g("s_nop 0")
    s_mfma(0); s_mfma(1)
    def ph1(hf):
        SO, SP, MX, _ = regs(hf); o = []
        for x in range(4):
            for r in range(4): o.append(f"v_max_f32 v{SO+4*x+r}, v{SO+4*x+r}, v{SP+4*x+r}")
        for x in range(4): o.append(f"v_max3_f32 v{MX+x}, v{SO+4*x}, v{SO+4*x+1}, v{SO+4*x+2}")
        for x in range(4): o.append(f"v_max_f32 v{MX+x}, v{MX+x}, v{SO+4*x+3}")
        return o
    for x in ph1(0): g(x)
    bg(g)
    for x in ph1(1): g(x)
    def ph2(hf):
        SO, SP, MX, _ = regs(hf)
        return [f"v_permlane32_swap_b32 v{MX}, v{MX+1}", f"v_permlane32_swap_b32 v{MX+2}, v{MX+3}", f"v_max_f32 v{MX}, v{MX}, v{MX+1}", f"v_max_f32 v{MX+2}, v{MX+2}, v{MX+3}", "s_nop 0",
                f"v_permlane16_swap_b32 v{MX}, v{MX+2}", f"v_max_f32 v{MX}, v{MX}, v{MX+2}", f"v_mul_f32 v{MX}, s{sT+3}, v{MX}", f"v_mov_b32 v{MX+2}, v{MX}", "s_nop 0",
                f"v_permlane16_swap_b32 v{MX}, v{MX+2}", f"v_mov_b32 v{MX+1}, v{MX}", f"v_mov_b32 v{MX+3}, v{MX+2}", "s_nop 0",
                f"v_permlane32_swap_b32 v{MX}, v{MX+1}", f"v_permlane32_swap_b32 v{MX+2}, v{MX+3}"]
    g(f"s_mov_b32 s{sT+3}, 0xbeb8aa3b"); g("s_nop 0")
    both(ph2)
    def ph3(hf):
        SO, SP, MX, _ = regs(hf)
        for x in range(4):
            for r in range(4): g(f"v_fma_f32 v{SO+4*x+r}, v{SO+4*x+r}, s{sT+4}, v{MX+x}")
        bg(g)
        for x in range(4):
            for r in range(4): g(f"v_exp_f32 v{SO+4*x+r}, v{SO+4*x+r}")
        bg(g); g("s_nop 0")
        for x in range(4):
            for h in range(2): g(f"v_cvt_pk_bf16_f32 v{SO+4*x+h}, v{SO+4*x+2*h}, v{SO+4*x+2*h+1}")
        for x in range(4):
            for h in range(2):
                g(f"v_bfi_b32 v{SP+4*x+h}, v{MK+h}, 0, v{SO+4*x+h}"); g(f"v_and_b32 v{SP+4*x+2+h}, v{MK+h}, v{SO+4*x+h}")
        g("s_nop 1")
        DN = 190 - 0 if hf == 0 else 10
        for x in range(4):
            T = 4*hf + 1 + x
            g(mfma(vr(DN+4*x), vr(ONE), vr(SP+4*x), "0")); g(mfma(vr(SO+4*x), vr(vdst(T) - 2), vr(SP+4*x), "0"))
    def ph4(hf):
        SO, SP, MX, OQ = regs(hf); DN = 190 if hf == 0 else 10
        for x in range(4): g(f"v_rcp_f32 v{DN+4*x}, v{DN+4*x}")
        g(f"s_add_u32 s{sSO}, s{sE1}, {hf*72*4096}"); g("s_nop 0")
        for x in range(4):
            for h in range(2): g(f"v_pk_mul_f32 {pr(SO+4*x+2*h)}, {pr(SO+4*x+2*h)}, {pr(DN+4*x)} op_sel:[0,0] op_sel_hi:[1,0]")
        for x in range(4):
            for h in range(2): g(f"v_cvt_pk_bf16_f32 v{OQ+2*x+h}, v{SO+4*x+2*h}, v{SO+4*x+2*h+1}")
        for bb in range(2): g.vmem(f"buffer_store_dwordx4 {vr(OQ+4*bb)}, v{vA2S}, {srd4(S_WS)}, s{sSO} offen offset:{bb*2048} sc1", "a2")
    ph3(0); ph3(1); ph4(0); ph4(1)
    g.stamp(11)

vA, NAB, vBB, vB2R, vXRES, vOUT, vPOLL = 64, 6, 10, 42, 50, 58, 59
XF, BF = 160, 176
def handoff(g):
    L = vLANE
    g(f"v_mov_b32 v2, s{sNON}"); g(f"v_mov_b32 v3, s{sNON+1}")
    rest = g.rest + unit(17)
    work = [f"v_accvgpr_write_b32 a{r}, 0" for r in range(128)]
    work += [f"s_lshr_b32 s{sT}, s{sRT2}, 1", f"s_lshl_b32 s{sT}, s{sT}, 13", f"s_add_u32 s{sT}, s{sT}, {F2}", f"v_lshlrev_b32 v{vPOLL}, 7, v{L}", f"v_add_u32 v{vPOLL}, s{sT}, v{vPOLL}",
             f"s_and_b32 s{sT}, s{sRT2}, 1", f"s_lshl_b32 s{sT}, s{sT}, 1", f"s_lshl_b32 s{sT+1}, 0x33333333, s{sT}",
             f"s_cmp_eq_u32 s{sW}, 0", f"s_cselect_b32 s{sT+2}, 0x00000fff, 0", f"s_cselect_b32 s{sSWP}, {(1<<3)|(1<<10)|(1<<17)}, 0",
             f"s_cmp_eq_u32 s{sW}, 1", f"s_cselect_b32 s{sT+2}, 0x00ffff00, s{sT+2}", f"s_cselect_b32 s{sSWP}, {(1<<6)|(1<<13)}, s{sSWP}",
             f"s_cmp_eq_u32 s{sW}, 2", f"s_cselect_b32 s{sT+2}, 0xfff00000, s{sT+2}", f"s_cselect_b32 s{sSWP}, {(1<<2)|(1<<9)|(1<<16)}, s{sSWP}",
             f"s_cmp_eq_u32 s{sW}, 3", f"s_cselect_b32 s{sT+2}, 0xf0000000, s{sT+2}", f"s_cselect_b32 s{sSWP}, {0x3fffc}, s{sSWP}",
             f"s_cselect_b32 s{sMASK}, -1, 0", f"s_and_b32 s{sMASK+1}, s{sT+1}, s{sT+2}",
             f"v_mov_b32 v4, {OOB}", f"v_cndmask_b32 v{vPOLL}, v4, v{vPOLL}, s[{sMASK}:{sMASK+1}]",
             f"s_mul_i32 s{sA2}, s{sRT2}, 72", f"s_mul_i32 s{sT}, s{sW}, 18", f"s_add_u32 s{sA2}, s{sA2}, s{sT}", f"s_lshl_b32 s{sA2}, s{sA2}, 12",
             ]
    work = [f"v_accvgpr_read_b32 v{vB2R+i}, a{104+i}" for i in range(8)] + [f"v_accvgpr_read_b32 v{vXRES+i}, a{96+i}" for i in range(8)] + [f"v_mov_b32 v{vOUT}, v{vE+6}"] + work
    K1 = O("k1", 4)
    for i in range(K1):
        emit(g, rest.pop(0))
        for z in work[i*145//K1:(i+1)*145//K1]: g(z)
    for z in work[145 if K1 else 0:]: g(z)
    g.wait_vm("a2")
    g.vmem(f"buffer_store_dwordx2 v[2:3], v{vE+5}, {srd4(S_WS)}, 0 offen sc1", "f2")
    g.stamp(12)
    extra = []
    pl = O("pollahead", 6)
    cut = max(0, len(rest) - pl)
    if g.dbg and O("fine", 0):
        seq = rest[:cut] + extra
        for i_, it in enumerate(seq):
            emit(g, it)
            if i_ % 4 == 3: g.stamp(24 + i_ // 4)
        g.flush()
    else: emit_all(g, rest[:cut] + extra)
    g.vmem(f"buffer_load_dwordx2 v[6:7], v{vPOLL}, {srd4(S_WS)}, 0 offen sc1", "poll2")
    emit_all(g, rest[cut:])
    g.stamp(20)
    g.wait_vm("poll2")
    g.stamp(21)
    if g.dbg: g("s_mov_b32 s101, 0")

def p2(g):
    L = vLANE
    spin(g, "SP2", vPOLL, 6, sMASK)
    g.stamp(13)
    if g.dbg: g("v_writelane_b32 v255, s101, 19")
    batch = plan()[1]
    X0 = batch[8]; assert [batch[j] for j in range(8, 12)] == [X0, X0+1, X0+2, X0+3]
    Y = [(X0 + 4 + rt) % 10 for rt in range(4)]
    def a_loads(j):
        base = vA + 16*(j % NAB)
        return [I(f"s_add_u32 s{sSO}, s{sA2}, {j*4096}")] + [V(f"buffer_load_dwordx4 {vr(base+4*q)}, v{vA2S}, {srd4(S_WS)}, s{sSO} offen offset:{q*1024} sc1", f"a{j}") for q in range(4)]
    AH = O("ahead", 3)
    for j in range(AH): emit_all(g, a_loads(j))
    def b_reads(j): return [I(f"ds_read_b64_tr_b16 {pr(vBB+16*(j&1)+4*t+2*h)}, {tr_addr(batch[j], t, h)}") for t in range(4) for h in range(2)]
    def step(j, accbase):
        base = vA + 16*(j % NAB); mf = []
        for rt in range(4):
            for t in range(4):
                d = ar(accbase + 16*rt + 4*t)
                mf.append(mfma(d, ar(128 + 16*j + 4*t) if j < 8 else vr(vBB + 16*(j&1) + 4*t), vr(base + 4*rt), d))
        return mf
    unp = [I(f"v_permlane16_swap_b32 v{vXRES+4*p+r}, v{vXRES+4*p+2+r}") for p in range(2) for r in range(2)]
    for t in range(4):
        for h in range(2):
            unp += [I(f"v_lshlrev_b32 v{XF+4*t+2*h}, 16, v{vXRES+2*t+h}"), I(f"v_and_b32 v{XF+4*t+2*h+1}, 0xffff0000, v{vXRES+2*t+h}"),
                    I(f"v_lshlrev_b32 v{BF+4*t+2*h}, 16, v{vB2R+2*t+h}"), I(f"v_and_b32 v{BF+4*t+2*h+1}, 0xffff0000, v{vB2R+2*t+h}")]
    red = [f"v_lshlrev_b32 v8, 4, v{L}", f"s_add_u32 s{sT}, s{sM0B}, {X0*16384}", f"v_add_u32 v2, s{sT}, v8", f"v_add_u32 v3, s{sM0B}, v8",
           f"s_lshl_b32 s{sT+1}, s{sW}, 14"]
    for d in range(1, 4):
        red += [f"s_add_u32 s{sT}, s{sW}, {d}", f"s_and_b32 s{sT}, s{sT}, 3", f"s_lshl_b32 s{sT}, s{sT}, 12", f"s_add_u32 s{sT}, s{sT}, s{sT+1}", f"s_add_u32 s{sT}, s{sT}, {X0*16384}", f"v_add_u32 v{3+d}, s{sT}, v8"]
    red = [I(x) for x in red] + [I(f"s_add_u32 s{sT}, s{sT+1}, {(X0+4)*16384}"), GRP(f"s_cmp_ge_u32 s{sT}, {10*16384}", f"s_cselect_b32 s{sT+2}, {10*16384}, 0"), I(f"s_sub_u32 s{sT}, s{sT}, s{sT+2}"), I(f"s_add_u32 s{sT}, s{sT}, {3*4096}")]
    red += [I(x) for x in (f"v_add_u32 v7, s{sT}, v8",
            f"s_mov_b32 s{sT+2}, 0xbfb8aa3b", f"s_mov_b32 s{sT+3}, 0xbfb8aa3b")]
    def ready(j):
        base = vA + 16*(j % NAB); lab = g.label("SW")
        return ("g", [("w", f"a{j}"), I(f"s_bitcmp1_b32 s{sSWP}, {j}"), I(f"s_cbranch_scc0 {lab}")]
                + [I(f"v_swap_b32 v{base+8*p+2+r}, v{base+8*p+4+r}") for p in range(2) for r in range(2)] + [I(f"{lab}:")])
    emit(g, ready(0))
    for j in range(18):
        if j >= 8: g("s_waitcnt lgkmcnt(0)")
        streams = []
        if 7 <= j < 17: streams.append((b_reads(j+1), 0.0, 0.7))
        if j + AH < 18: streams.append((a_loads(j + AH), 0.0, 0.6))
        if j == 3: streams.append((unp[:18], 0.0, 1.0))
        if j == 4: streams.append((unp[18:], 0.0, 1.0))
        if j == 5: streams.append((red, 0.0, 1.0))
        if 12 <= j < 15:
            t3 = j - 12
        rp = O("readyat", 75) / 100
        def park():
            if not 12 <= j < 15: return []
            o = []
            for hh in range(2):
                lab = g.label("T3")
                o.append(GRP(f"s_cmp_eq_u32 s{sW}, 3", f"s_cbranch_scc0 {lab}", *[f"ds_write_b128 v2, {ar(64+16*(j-12)+4*t)} offset:{(j-12)*16384 + t*1024}" for t in (2*hh, 2*hh+1)], f"{lab}:"))
            return [(o, 0.3, 0.7)]
        def tm(): return merge(*(streams + park() + ([([ready(j+1)], rp, rp)] if j < 17 else [])))
        if j < 2:
            la = g.label("W3")
            g(f"s_cmp_eq_u32 s{sW}, 3"); g(f"s_cbranch_scc1 {la}")
            vm0 = list(g.vm); interleave(g, step(j, 0), tm())
            g(f"s_branch {la}_e"); g(f"{la}:")
            g.vm = vm0; interleave(g, step(j, 64), tm())
            g(f"{la}_e:")
        else: interleave(g, step(j, 0), tm())
    g.stamp(14)
    R = 64
    for w in range(4):
        la = g.label("RW")
        if w < 3: g(f"s_cmp_eq_u32 s{sW}, {w}"); g(f"s_cbranch_scc0 {la}")
        order = [rt for rt in range(4) if w == 3 or rt != w]
        g("s_nop 3")
        for rt in order:
            if rt == 3: g("s_nop 3")
            if w == 3: g(f"v_add_u32 v9, {Y[rt]*16384}, v3")
            for t in range(4): g(f"ds_write_b128 v{9 if w == 3 else 2}, {ar(16*rt+4*t)} offset:{(0 if w == 3 else rt*16384) + t*1024}")
        src = 16*w if w < 3 else 64 + 48
        for i in range(16): g(f"v_accvgpr_read_b32 v{R+i}, a{src+i}")
        if w < 3: g("s_branch L_RED"); g(f"{la}:")
    g("L_RED:")
    for i in range(8): g(f"v_pk_add_f32 {pr(R+2*i)}, {pr(R+2*i)}, {pr(BF+2*i)}")
    g("s_waitcnt lgkmcnt(0)"); g.stamp(22); g("s_barrier"); g.stamp(23)
    for d in range(3):
        for t in range(4): g(f"ds_read_b128 {vr(R+16+16*d+4*t)}, v{4+d} offset:{t*1024}")
    for t in range(4): g(f"ds_read_b128 {vr(R+64+4*t)}, v7 offset:{t*1024}")
    for d in range(3):
        g(f"s_waitcnt lgkmcnt({12-4*d})")
        for i in range(8): g(f"v_pk_add_f32 {pr(R+2*i)}, {pr(R+2*i)}, {pr(R+16+16*d+2*i)}")
    E = R + 16
    for i in range(8): g(f"v_pk_mul_f32 {pr(E+2*i)}, {pr(R+2*i)}, s[{sT+2}:{sT+3}]")
    for i in range(16): g(f"v_exp_f32 v{E+i}, v{E+i}")
    g("s_waitcnt lgkmcnt(0)")
    for i in range(8): g(f"v_pk_mul_f32 {pr(R+2*i)}, {pr(R+2*i)}, {pr(R+64+2*i)}")
    for i in range(8): g(f"v_pk_add_f32 {pr(E+2*i)}, {pr(E+2*i)}, 1.0 op_sel_hi:[1,0]")
    for i in range(16): g(f"v_rcp_f32 v{E+i}, v{E+i}")
    Oo = R + 32
    for p in range(2):
        for i in range(4*p, 4*p+4): g(f"v_pk_fma_f32 {pr(R+2*i)}, {pr(R+2*i)}, {pr(E+2*i)}, {pr(XF+2*i)}")
        for i in range(4*p, 4*p+4): g(f"v_cvt_pk_bf16_f32 v{Oo+i}, v{R+2*i}, v{R+2*i+1}")
        g("s_nop 1")
        for r in range(2): g(f"v_permlane16_swap_b32 v{Oo+4*p+r}, v{Oo+4*p+2+r}")
        g(f"buffer_store_dwordx4 {vr(Oo+4*p)}, v{vOUT}, {srd4(S_OUT)}, 0 offen offset:{64*p} {'sc1' if O('outsc1', 0) else ''}")
    g.stamp(15)
    if g.dbg:
        g(f"s_memrealtime s[{sST}:{sST+1}]"); g("s_waitcnt lgkmcnt(0)"); g(f"v_writelane_b32 v255, s{sST}, 16")
        g(f"s_lshl_b32 s{sT}, s2, 2"); g(f"s_add_u32 s{sT}, s{sT}, s{sW}"); g(f"s_lshl_b32 s{sT}, s{sT}, 8"); g(f"s_add_u32 s{sT}, s{sT}, {TSTAMP}")
        g(f"v_lshlrev_b32 v2, 2, v{L}"); g(f"v_add_u32 v2, s{sT}, v2")
        g(f"buffer_store_dword v255, v2, {srd4(S_WS)}, 0 offen")

def build(dbg=False):
    g = G(dbg)
    prologue(g)
    vm0 = list(g.vm)
    p1(g, 0, vm0)
    g("s_branch L_P2")
    g("L_FFN:")
    p1(g, 1, vm0)
    g("L_P2:")
    g.vm = []
    p2(g)
    g("L_END:")
    g("s_endpgm")
    g("L_CODE_END:")
    hdr = open("cdna_kernels/" + NAME + ".s.ref").read().split("; Override")[0]
    return hdr + header([(None, 256, 256, LDS_BYTES)]) + kernel_wrap(NAME + "_kernel", g.text(), 512, sgpr=102, accum=256)

if __name__ == "__main__":
    for a_ in sys.argv[1:]:
        if a_.startswith("--") and a_ != "--dbg":
            k_, _, v_ = a_[2:].partition("="); OPT[k_] = int(v_) if v_ else 1
    out = [a for a in sys.argv[1:] if not a.startswith("--")][0]
    open(out, "w").write(build("--dbg" in sys.argv))
```
